```python
import torch

def _softmax(x, axis=-1):
    return torch.softmax(x, dim=axis)

def _gelu(x):
    return torch.nn.functional.gelu(x, approximate='tanh')

def _silu(x):
    return torch.nn.functional.silu(x)

def _sigmoid(x):
    return torch.sigmoid(x)

def _layernorm(x, axis=-1, eps=1e-05):
    m = x.mean(dim=axis, keepdim=True)
    v = x.var(dim=axis, keepdim=True, unbiased=False)
    return (x - m) / torch.sqrt(v + eps)

def _scatter_add(tgt, idx, src, axis=0):
    return tgt.clone().index_add_(axis, idx, src)

def _segment_sum(src, seg, n):
    out = torch.zeros((n,) + src.shape[1:], dtype=src.dtype)
    return out.index_add_(0, seg, src)

def _pad(x, pw):
    flat = tuple((v for pair in reversed(pw) for v in pair))
    return torch.nn.functional.pad(x, flat)
kernel_name = 'gated_mix__grouped_kv_mqa__mixer_gmlp__prompt'

def setup_inputs():

    _w = lambda a: (lambda t: t.to(torch.bfloat16) if t.is_floating_point() else t)(torch.as_tensor(a))

    def _A_setup():
        B, S, D, H = (1, 2048, 1024, 32)
        Dh = D // H
        return {'x': _w((lambda *s: torch.randn(*s, dtype=torch.bfloat16) * 0.05)(B, S, D)), 'wq': _w((lambda *s: torch.randn(*s, dtype=torch.bfloat16) * 0.8)(D, H * Dh)), 'wk': _w((lambda *s: torch.randn(*s, dtype=torch.bfloat16) * 0.8)(D, Dh)), 'wv': _w((lambda *s: torch.randn(*s, dtype=torch.bfloat16) * 0.2)(D, Dh)), 'wo': _w((lambda *s: torch.randn(*s, dtype=torch.bfloat16) * 0.2)(H * Dh, D))}
    _A_in = _A_setup()

    def _B_setup():
        B, S, D, F = (1, 2048, 1024, 3584)
        Fh = F // 2
        return {'x': _w((lambda *s: torch.randn(*s, dtype=torch.bfloat16) * 0.05)(B, S, D)), 'w_in': _w((lambda *s: torch.randn(*s, dtype=torch.bfloat16) * 0.4)(D, 2 * Fh)), 'w_sp': _w(0.01 * (lambda *s: torch.randn(*s, dtype=torch.bfloat16) * 0.4)(S, S)), 'b_sp': _w(1.0 + 0.01 * (lambda *s: torch.randn(*s, dtype=torch.bfloat16) * 0.05)(S)), 'w_out': _w((lambda *s: torch.randn(*s, dtype=torch.bfloat16) * 0.05)(Fh, D))}
    _B_in = _B_setup()
    return {'A_x': _A_in['x'], 'A_wq': _A_in['wq'], 'A_wk': _A_in['wk'], 'A_wv': _A_in['wv'], 'A_wo': _A_in['wo'], 'B_x': _B_in['x'], 'B_w_in': _B_in['w_in'], 'B_w_sp': _B_in['w_sp'], 'B_b_sp': _B_in['b_sp'], 'B_w_out': _B_in['w_out'], 'gate_w': _w((lambda *s: torch.randn(*s, dtype=torch.bfloat16) * 0.05)(1024) * 16.0)}

def reference(A_x, A_wq, A_wk, A_wv, A_wo, B_x, B_w_in, B_w_sp, B_b_sp, B_w_out, gate_w):

    def _A_ref(x, wq, wk, wv, wo):
        B, S, D = x.shape
        H = 32
        Dh = D // H
        q = (lambda x, *d: x.permute(*d))((x @ wq).reshape(B, S, H, Dh), 0, 2, 1, 3)
        k = x @ wk
        v = x @ wv
        scores = torch.einsum('bhqd,bkd->bhqk', q, k) * Dh ** (-0.5)
        p = _softmax(scores, axis=-1)
        o = torch.einsum('bhqk,bkd->bhqd', p, v)
        return (lambda x, *d: x.permute(*d))(o, 0, 2, 1, 3).reshape(B, S, H * Dh) @ wo

    def _B_ref(x, w_in, w_sp, b_sp, w_out):
        B, S, D = x.shape
        F = w_in.shape[-1]
        Fh = F // 2
        z = _gelu(torch.einsum('bsd,df->bsf', x, w_in))
        z1 = z[..., :Fh].clone()
        z2 = _layernorm(z[..., Fh:], axis=-1)
        g = torch.einsum('ts,bsf->btf', w_sp, z2) + b_sp[None, :, None]
        return torch.einsum('bsf,fd->bsd', z1 * g, w_out)
    x = A_x
    g = _sigmoid((x * gate_w).sum(-1, keepdims=True))
    a = _A_ref(x, A_wq, A_wk, A_wv, A_wo)
    b = _B_ref(x, B_w_in, B_w_sp, B_b_sp, B_w_out)
    return g * a + (1 - g) * b
```

```python
import struct

WS_Q  = 0x0000000
WS_KV = 0x0400000
WS_G  = 0x0448000
WS_FL = 0x044C000
WS_ST = 0x0450000
WS_Z2 = 0x0500000
WS_Z1 = 0x0C00000
WS_AH = 0x1400000
WS_END = 0x2000000

ARG = dict(x=0, wq=8, wk=16, wv=24, wo=32, w_in=48, w_sp=56, b_sp=64, w_out=72, gate=80, out=88, dbg=96, ws=104)
SIZE = dict(x=2048*1024*2, wq=1024*1024*2, wk=1024*32*2, wv=1024*32*2, wo=1024*1024*2, w_in=1024*3584*2,
            w_sp=2048*2048*2, b_sp=2048*2, w_out=1792*1024*2, gate=1024*2, out=2048*1024*2, dbg=256, ws=WS_END)

def f2u(x):
    return struct.unpack("<I", struct.pack("<f", x))[0]

def fhex(x):
    return "0x%08x" % f2u(x)

class Asm:
    def __init__(self):
        self.lines = []
    def __call__(self, s):
        for ln in s.split("\n"):
            ln = ln.strip()
            if ln:
                self.lines.append(ln if ln.endswith(":") else "    " + ln)
    def ext(self, lst):
        for s in lst:
            self(s)
    def text(self):
        return "\n".join(self.lines) + "\n"

def vr(a, n):
    return f"v[{a}:{a+n-1}]" if n > 1 else f"v{a}"
def sr(a, n):
    return f"s[{a}:{a+n-1}]" if n > 1 else f"s{a}"

def load_ptr(a, name, s):
    a(f"s_load_dwordx2 s[{s}:{s+1}], s[0:1], {ARG[name]}")
def finish_srd(a, name, s):
    a(f"s_mov_b32 s{s+2}, {SIZE[name]:#x}")
    a(f"s_mov_b32 s{s+3}, 0x20000")

def interleave(mf, fill):
    out = []
    for i, m in enumerate(mf):
        out.append(m)
        out += fill.get(i, [])
    return out

GELU_C0 = -2.0 * 0.7978845608028654 * 1.4426950408889634
GELU_C1 = GELU_C0 * 0.044715

def gelu_packed(a, regs, tmp, cpair):
    for i in range(0, len(regs), 4):
        grp = regs[i:i+4]
        T = [tmp + 2*k for k in range(len(grp))]
        for r, t in zip(grp, T):
            a(f"v_pk_mul_f32 {vr(t,2)}, {vr(r,2)}, {vr(r,2)}")
        for r, t in zip(grp, T):
            a(f"v_pk_fma_f32 {vr(t,2)}, {vr(t,2)}, {vr(cpair,2)}, {vr(cpair,2)} op_sel:[0,1,0] op_sel_hi:[1,1,0]")
        for r, t in zip(grp, T):
            a(f"v_pk_mul_f32 {vr(t,2)}, {vr(t,2)}, {vr(r,2)}")
        for t in T:
            a(f"v_exp_f32 v{t}, v{t}")
            a(f"v_exp_f32 v{t+1}, v{t+1}")
        if len(grp) == 1:
            a("s_nop 0")
        for t in T:
            a(f"v_pk_add_f32 {vr(t,2)}, {vr(t,2)}, 1.0 op_sel_hi:[1,0]")
        for t in T:
            a(f"v_rcp_f32 v{t}, v{t}")
            a(f"v_rcp_f32 v{t+1}, v{t+1}")
        if len(grp) == 1:
            a("s_nop 0")
        for r, t in zip(grp, T):
            a(f"v_pk_mul_f32 {vr(r,2)}, {vr(r,2)}, {vr(t,2)}")

def descriptor(name, vgpr, sgpr=102, accum=None):
    if accum is None:
        accum = min(256, (vgpr + 3)//4*4)
    return f""".amdhsa_kernel {name}
  .amdhsa_next_free_vgpr {vgpr}
  .amdhsa_next_free_sgpr {sgpr}
  .amdhsa_accum_offset {accum}
  .amdhsa_group_segment_fixed_size 0
  .amdhsa_kernarg_size 112
  .amdhsa_user_sgpr_count 2
  .amdhsa_user_sgpr_kernarg_segment_ptr 1
  .amdhsa_system_sgpr_workgroup_id_x 1
.end_amdhsa_kernel
"""

import os
STAMPS = int(os.environ.get("STAMPS", "0"))
WS_DBG = 0x1F00000
S_STAMP = 76
def stamp(a, i):
    if not STAMPS: return
    a(f"{'s_memtime' if STAMPS == 1 else 's_memrealtime'} s[{S_STAMP+2*i}:{S_STAMP+2*i+1}]")
    if i == 0:
        a(f"s_memrealtime s[{S_STAMP-2}:{S_STAMP-1}]")
    a("s_waitcnt lgkmcnt(0)")
def stamp_flush(a, n, srd_ws, s_wave, kidx, vt, add=0):
    if not STAMPS: return
    stamp(a, n)
    a(f"s_memrealtime s[{S_STAMP-4}:{S_STAMP-3}]")
    a("s_waitcnt lgkmcnt(0)")
    a("s_mov_b64 exec, 1")
    a(f"s_lshl_b32 s{S_STAMP-1}, s2, 3")
    a(f"s_add_u32 s{S_STAMP-1}, s{S_STAMP-1}, s{s_wave}")
    a(f"s_add_u32 s{S_STAMP-1}, s{S_STAMP-1}, {add}")
    a(f"s_lshl_b32 s{S_STAMP-1}, s{S_STAMP-1}, 6")
    a(f"s_add_u32 s{S_STAMP-1}, s{S_STAMP-1}, {WS_DBG + kidx*0x40000}")
    regs = [S_STAMP-2, S_STAMP-4] + [S_STAMP+2*i for i in range(n+1)]
    for k, r in enumerate(regs):
        a(f"v_mov_b32 v{vt}, s{r}")
        a(f"buffer_store_dword v{vt}, off, {sr(srd_ws,4)}, s{S_STAMP-1} offset:{4*k}")
```

```python
import sys, importlib
from common import *
HEADER = open("gated_mix__grouped_kv_mqa__mixer_gmlp__prompt.s.ref").read().split("; Override launch")[0]
def build(mods, out):
    parts = [importlib.import_module(m).gen() for m in mods]
    s = HEADER + "\n".join(p[2] for p in parts) + "\n"
    s += '.amdgcn_target "amdgcn-amd-amdhsa--gfx950"\n.text\n'
    for m, p in zip(mods, parts):
        name = importlib.import_module(m).NAME
        s += f".globl {name}\n.p2align 12\n.p2align 8\n.type {name},@function\n" + p[0]
    s += '.section .rodata,"a"\n'
    for p in parts:
        s += ".p2align 6\n" + p[1]
    open(out, "w").write(s)
if __name__ == "__main__":
    build(sys.argv[2:], sys.argv[1])
```

```python
import struct

WS_Q  = 0x0000000
WS_KV = 0x0400000
WS_G  = 0x0448000
WS_FL = 0x044C000
WS_ST = 0x0450000
WS_Z2 = 0x0500000
WS_Z1 = 0x0C00000
WS_AH = 0x1400000
WS_END = 0x2000000

ARG = dict(x=0, wq=8, wk=16, wv=24, wo=32, w_in=48, w_sp=56, b_sp=64, w_out=72, gate=80, out=88, dbg=96, ws=104)
SIZE = dict(x=2048*1024*2, wq=1024*1024*2, wk=1024*32*2, wv=1024*32*2, wo=1024*1024*2, w_in=1024*3584*2,
            w_sp=2048*2048*2, b_sp=2048*2, w_out=1792*1024*2, gate=1024*2, out=2048*1024*2, dbg=256, ws=WS_END)

def f2u(x):
    return struct.unpack("<I", struct.pack("<f", x))[0]

def fhex(x):
    return "0x%08x" % f2u(x)

class Asm:
    def __init__(self):
        self.lines = []
    def __call__(self, s):
        for ln in s.split("\n"):
            ln = ln.strip()
            if ln:
                self.lines.append(ln if ln.endswith(":") else "    " + ln)
    def ext(self, lst):
        for s in lst:
            self(s)
    def text(self):
        return "\n".join(self.lines) + "\n"

def vr(a, n):
    return f"v[{a}:{a+n-1}]" if n > 1 else f"v{a}"
def sr(a, n):
    return f"s[{a}:{a+n-1}]" if n > 1 else f"s{a}"

def load_ptr(a, name, s):
    a(f"s_load_dwordx2 s[{s}:{s+1}], s[0:1], {ARG[name]}")
def finish_srd(a, name, s):
    a(f"s_mov_b32 s{s+2}, {SIZE[name]:#x}")
    a(f"s_mov_b32 s{s+3}, 0x20000")

def interleave(mf, fill):
    out = []
    for i, m in enumerate(mf):
        out.append(m)
        out += fill.get(i, [])
    return out

GELU_C0 = -2.0 * 0.7978845608028654 * 1.4426950408889634
GELU_C1 = GELU_C0 * 0.044715

def gelu_packed(a, regs, tmp, cpair):
    for i in range(0, len(regs), 4):
        grp = regs[i:i+4]
        T = [tmp + 2*k for k in range(len(grp))]
        for r, t in zip(grp, T):
            a(f"v_pk_mul_f32 {vr(t,2)}, {vr(r,2)}, {vr(r,2)}")
        for r, t in zip(grp, T):
            a(f"v_pk_fma_f32 {vr(t,2)}, {vr(t,2)}, {vr(cpair,2)}, {vr(cpair,2)} op_sel:[0,1,0] op_sel_hi:[1,1,0]")
        for r, t in zip(grp, T):
            a(f"v_pk_mul_f32 {vr(t,2)}, {vr(t,2)}, {vr(r,2)}")
        for t in T:
            a(f"v_exp_f32 v{t}, v{t}")
            a(f"v_exp_f32 v{t+1}, v{t+1}")
        if len(grp) == 1:
            a("s_nop 0")
        for t in T:
            a(f"v_pk_add_f32 {vr(t,2)}, {vr(t,2)}, 1.0 op_sel_hi:[1,0]")
        for t in T:
            a(f"v_rcp_f32 v{t}, v{t}")
            a(f"v_rcp_f32 v{t+1}, v{t+1}")
        if len(grp) == 1:
            a("s_nop 0")
        for r, t in zip(grp, T):
            a(f"v_pk_mul_f32 {vr(r,2)}, {vr(r,2)}, {vr(t,2)}")

def descriptor(name, vgpr, sgpr=102, accum=None):
    if accum is None:
        accum = min(256, (vgpr + 3)//4*4)
    return f""".amdhsa_kernel {name}
  .amdhsa_next_free_vgpr {vgpr}
  .amdhsa_next_free_sgpr {sgpr}
  .amdhsa_accum_offset {accum}
  .amdhsa_group_segment_fixed_size 0
  .amdhsa_kernarg_size 112
  .amdhsa_user_sgpr_count 2
  .amdhsa_user_sgpr_kernarg_segment_ptr 1
  .amdhsa_system_sgpr_workgroup_id_x 1
.end_amdhsa_kernel
"""

import os
STAMPS = int(os.environ.get("STAMPS", "0"))
WS_DBG = 0x1F00000
S_STAMP = 76
def stamp(a, i):
    if not STAMPS: return
    a(f"{'s_memtime' if STAMPS == 1 else 's_memrealtime'} s[{S_STAMP+2*i}:{S_STAMP+2*i+1}]")
    if i == 0:
        a(f"s_memrealtime s[{S_STAMP-2}:{S_STAMP-1}]")
    a("s_waitcnt lgkmcnt(0)")
def stamp_flush(a, n, srd_ws, s_wave, kidx, vt, add=0):
    if not STAMPS: return
    stamp(a, n)
    a(f"s_memrealtime s[{S_STAMP-4}:{S_STAMP-3}]")
    a("s_waitcnt lgkmcnt(0)")
    a("s_mov_b64 exec, 1")
    a(f"s_lshl_b32 s{S_STAMP-1}, s2, 3")
    a(f"s_add_u32 s{S_STAMP-1}, s{S_STAMP-1}, s{s_wave}")
    a(f"s_add_u32 s{S_STAMP-1}, s{S_STAMP-1}, {add}")
    a(f"s_lshl_b32 s{S_STAMP-1}, s{S_STAMP-1}, 6")
    a(f"s_add_u32 s{S_STAMP-1}, s{S_STAMP-1}, {WS_DBG + kidx*0x40000}")
    if os.environ.get("DBGOUT") and add == 0:
        a(f"s_cmp_lg_u32 s2, {os.environ['DBGOUT']}")
        a("s_cbranch_scc1 DBG_skip")
        a(f"s_cmp_lg_u32 s{s_wave}, 0")
        a("s_cbranch_scc1 DBG_skip")
        for i in range(1, n+1):
            a(f"s_sub_u32 s{S_STAMP-3}, s{S_STAMP+2*i}, s{S_STAMP}")
            a(f"v_mov_b32 v{vt}, s{S_STAMP-3}")
            a(f"buffer_store_dword v{vt}, off, s[28:31], 0 offset:{4*i}")
        a("DBG_skip:")
    regs = [S_STAMP-2, S_STAMP-4] + [S_STAMP+2*i for i in range(n+1)]
    for k, r in enumerate(regs):
        a(f"v_mov_b32 v{vt}, s{r}")
        a(f"buffer_store_dword v{vt}, off, {sr(srd_ws,4)}, s{S_STAMP-1} offset:{4*k}")
```

```python
import struct

WS_Q  = 0x0000000
WS_KV = 0x0400000
WS_G  = 0x0448000
WS_FL = 0x044C000
WS_ST = 0x0450000
WS_Z2 = 0x0500000
WS_Z1 = 0x0C00000
WS_AH = 0x0C00000
WS_END = 0x2000000

ARG = dict(x=0, wq=8, wk=16, wv=24, wo=32, w_in=48, w_sp=56, b_sp=64, w_out=72, gate=80, out=88, dbg=96, ws=104)
SIZE = dict(x=2048*1024*2, wq=1024*1024*2, wk=1024*32*2, wv=1024*32*2, wo=1024*1024*2, w_in=1024*3584*2,
            w_sp=2048*2048*2, b_sp=2048*2, w_out=1792*1024*2, gate=1024*2, out=2048*1024*2, dbg=256, ws=WS_END)

def f2u(x):
    return struct.unpack("<I", struct.pack("<f", x))[0]

def fhex(x):
    return "0x%08x" % f2u(x)

class Asm:
    def __init__(self):
        self.lines = []
    def __call__(self, s):
        for ln in s.split("\n"):
            ln = ln.strip()
            if ln:
                self.lines.append(ln if ln.endswith(":") else "    " + ln)
    def ext(self, lst):
        for s in lst:
            self(s)
    def text(self):
        return "\n".join(self.lines) + "\n"

def vr(a, n):
    return f"v[{a}:{a+n-1}]" if n > 1 else f"v{a}"
def sr(a, n):
    return f"s[{a}:{a+n-1}]" if n > 1 else f"s{a}"

def load_ptr(a, name, s):
    a(f"s_load_dwordx2 s[{s}:{s+1}], s[0:1], {ARG[name]}")
def finish_srd(a, name, s):
    a(f"s_mov_b32 s{s+2}, {SIZE[name]:#x}")
    a(f"s_mov_b32 s{s+3}, 0x20000")

def interleave(mf, fill):
    out = []
    for i, m in enumerate(mf):
        out.append(m)
        out += fill.get(i, [])
    return out

GELU_C0 = -2.0 * 0.7978845608028654 * 1.4426950408889634
GELU_C1 = GELU_C0 * 0.044715

def gelu_packed(a, regs, tmp, cpair):
    a(".p2align 3")
    for i in range(0, len(regs), 4):
        grp = regs[i:i+4]
        T = [tmp + 2*k for k in range(len(grp))]
        for r, t in zip(grp, T):
            a(f"v_pk_mul_f32 {vr(t,2)}, {vr(r,2)}, {vr(r,2)}")
        for r, t in zip(grp, T):
            a(f"v_pk_fma_f32 {vr(t,2)}, {vr(t,2)}, {vr(cpair,2)}, {vr(cpair,2)} op_sel:[0,1,0] op_sel_hi:[1,1,0]")
        for r, t in zip(grp, T):
            a(f"v_pk_mul_f32 {vr(t,2)}, {vr(t,2)}, {vr(r,2)}")
        for t in T:
            a(f"v_exp_f32 v{t}, v{t}")
            a(f"v_exp_f32 v{t+1}, v{t+1}")
        if len(grp) == 1:
            a("s_nop 0")
        for t in T:
            a(f"v_pk_add_f32 {vr(t,2)}, {vr(t,2)}, 1.0 op_sel_hi:[1,0]")
        for t in T:
            a(f"v_rcp_f32 v{t}, v{t}")
            a(f"v_rcp_f32 v{t+1}, v{t+1}")
        if len(grp) == 1:
            a("s_nop 0")
        for r, t in zip(grp, T):
            a(f"v_pk_mul_f32 {vr(r,2)}, {vr(r,2)}, {vr(t,2)}")

def descriptor(name, vgpr, sgpr=102, accum=None):
    if accum is None:
        accum = min(256, (vgpr + 3)//4*4)
    return f""".amdhsa_kernel {name}
  .amdhsa_next_free_vgpr {vgpr}
  .amdhsa_next_free_sgpr {sgpr}
  .amdhsa_accum_offset {accum}
  .amdhsa_group_segment_fixed_size 0
  .amdhsa_kernarg_size 112
  .amdhsa_user_sgpr_count 2
  .amdhsa_user_sgpr_kernarg_segment_ptr 1
  .amdhsa_system_sgpr_workgroup_id_x 1
.end_amdhsa_kernel
"""

import os
STAMPS = int(os.environ.get("STAMPS", "0"))
WS_DBG = 0x1F00000
S_STAMP = 76
def stamp(a, i):
    if not STAMPS: return
    a(f"{'s_memtime' if STAMPS == 1 else 's_memrealtime'} s[{S_STAMP+2*i}:{S_STAMP+2*i+1}]")
    if i == 0:
        a(f"s_memrealtime s[{S_STAMP-2}:{S_STAMP-1}]")
    a("s_waitcnt lgkmcnt(0)")
def stamp_flush(a, n, srd_ws, s_wave, kidx, vt, add=0):
    if not STAMPS: return
    stamp(a, n)
    a(f"s_memrealtime s[{S_STAMP-4}:{S_STAMP-3}]")
    a("s_waitcnt lgkmcnt(0)")
    a("s_mov_b64 exec, 1")
    a(f"s_lshl_b32 s{S_STAMP-1}, s2, 3")
    a(f"s_add_u32 s{S_STAMP-1}, s{S_STAMP-1}, s{s_wave}")
    a(f"s_add_u32 s{S_STAMP-1}, s{S_STAMP-1}, {add}")
    a(f"s_lshl_b32 s{S_STAMP-1}, s{S_STAMP-1}, 6")
    a(f"s_add_u32 s{S_STAMP-1}, s{S_STAMP-1}, {WS_DBG + kidx*0x40000}")
    if os.environ.get("DBGOUT") and add == 0:
        a(f"s_cmp_lg_u32 s2, {os.environ['DBGOUT']}")
        a("s_cbranch_scc1 DBG_skip")
        a(f"s_cmp_lg_u32 s{s_wave}, 0")
        a("s_cbranch_scc1 DBG_skip")
        for i in range(1, n+1):
            a(f"s_sub_u32 s{S_STAMP-3}, s{S_STAMP+2*i}, s{S_STAMP}")
            a(f"v_mov_b32 v{vt}, s{S_STAMP-3}")
            a(f"buffer_store_dword v{vt}, off, s[28:31], 0 offset:{4*i}")
        a("DBG_skip:")
    regs = [S_STAMP-2, S_STAMP-4] + [S_STAMP+2*i for i in range(n+1)]
    for k, r in enumerate(regs):
        a(f"v_mov_b32 v{vt}, s{r}")
        a(f"buffer_store_dword v{vt}, off, {sr(srd_ws,4)}, s{S_STAMP-1} offset:{4*k}")

import subprocess, re, tempfile
def instr_sizes(lines):
    body = [ln for ln in lines if not ln.strip().startswith(".")]
    with tempfile.TemporaryDirectory() as d:
        open(d + "/t.s", "w").write('.amdgcn_target "amdgcn-amd-amdhsa--gfx950"\n.text\n' + "\n".join(body) + "\n")
        subprocess.run(["clang", "-x", "assembler", "-target", "amdgcn-amd-amdhsa", "-mcpu=gfx950", "-c", d + "/t.s", "-o", d + "/t.o"], check=True)
        out = subprocess.run(["llvm-objdump", "-d", "--mcpu=gfx950", d + "/t.o"], capture_output=True, text=True).stdout
    enc = [4*len(m.group(1).split()) for m in re.finditer(r"// [0-9A-F]+: ((?:[0-9A-F]{8} ?)+)", out)]
    sizes, k = [], 0
    for ln in lines:
        t = ln.strip()
        if t.startswith(".") or t.endswith(":"):
            sizes.append(0)
        else:
            sizes.append(enc[k]); k += 1
    assert k == len(enc)
    return sizes

def insert_page_stubs(lines, ret, first_room=3072):
    sizes = instr_sizes(lines)
    out, pages, i, room = [], [], 0, first_room
    while i < len(lines):
        off, j, best = (0 if not pages else 8), i, None
        while j < len(lines):
            t = lines[j].strip()
            noff = off + sizes[j]
            if t.startswith(".p2align"):
                al = 1 << int(t.split()[1]); noff = -(-off // al)*al
            if noff + 4 > room: break
            off = noff; j += 1
            prev = lines[j-1].strip()
            score = 3 if prev.startswith(("s_branch", "s_endpgm", "s_setpc")) else 2 if prev.startswith("v_mfma_f32_32") else 1 if prev.startswith("v_mfma") else 0
            if sizes[j-1] and prev != "s_nop 0" and room - off <= (400 if score == 3 else 128) and (best is None or score >= best[0]): best = (score, j)
        if j >= len(lines):
            out += lines[i:]; break
        score, j = best
        out += lines[i:j]
        n = len(pages)
        if score < 3: out.append(f"    s_branch PG{n}_go")
        out += ["    .p2align 12", f"PG{n}:", f"    s_setpc_b64 s[{ret}:{ret+1}]", "    s_nop 0", f"PG{n}_go:"]
        pages.append(j)
        i, room = j, 4096
    return out, pages
```

```python
import struct

WS_Q  = 0x0000000
WS_KV = 0x0400000
WS_G  = 0x0448000
WS_FL = 0x044C000
WS_ST = 0x0450000
WS_Z2 = 0x0500000
WS_Z1 = 0x0C00000
WS_AH = 0x0C00000
WS_END = 0x2000000

ARG = dict(x=0, wq=8, wk=16, wv=24, wo=32, w_in=48, w_sp=56, b_sp=64, w_out=72, gate=80, out=88, dbg=96, ws=104)
SIZE = dict(x=2048*1024*2, wq=1024*1024*2, wk=1024*32*2, wv=1024*32*2, wo=1024*1024*2, w_in=1024*3584*2,
            w_sp=2048*2048*2, b_sp=2048*2, w_out=1792*1024*2, gate=1024*2, out=2048*1024*2, dbg=256, ws=WS_END)

def f2u(x):
    return struct.unpack("<I", struct.pack("<f", x))[0]

def fhex(x):
    return "0x%08x" % f2u(x)

class Asm:
    def __init__(self):
        self.lines = []
    def __call__(self, s):
        for ln in s.split("\n"):
            ln = ln.strip()
            if ln:
                self.lines.append(ln if ln.endswith(":") else "    " + ln)
    def ext(self, lst):
        for s in lst:
            self(s)
    def text(self):
        return "\n".join(self.lines) + "\n"

def vr(a, n):
    return f"v[{a}:{a+n-1}]" if n > 1 else f"v{a}"
def sr(a, n):
    return f"s[{a}:{a+n-1}]" if n > 1 else f"s{a}"

def load_ptr(a, name, s):
    a(f"s_load_dwordx2 s[{s}:{s+1}], s[0:1], {ARG[name]}")
def finish_srd(a, name, s):
    a(f"s_mov_b32 s{s+2}, {SIZE[name]:#x}")
    a(f"s_mov_b32 s{s+3}, 0x20000")

def interleave(mf, fill):
    out = []
    for i, m in enumerate(mf):
        out.append(m)
        out += fill.get(i, [])
    return out

GELU_C0 = -2.0 * 0.7978845608028654 * 1.4426950408889634
GELU_C1 = GELU_C0 * 0.044715

def gelu_packed(a, regs, tmp, cpair):
    a(".p2align 3")
    for i in range(0, len(regs), 4):
        grp = regs[i:i+4]
        T = [tmp + 2*k for k in range(len(grp))]
        for r, t in zip(grp, T):
            a(f"v_pk_mul_f32 {vr(t,2)}, {vr(r,2)}, {vr(r,2)}")
        for r, t in zip(grp, T):
            a(f"v_pk_fma_f32 {vr(t,2)}, {vr(t,2)}, {vr(cpair,2)}, {vr(cpair,2)} op_sel:[0,1,0] op_sel_hi:[1,1,0]")
        for r, t in zip(grp, T):
            a(f"v_pk_mul_f32 {vr(t,2)}, {vr(t,2)}, {vr(r,2)}")
        for t in T:
            a(f"v_exp_f32 v{t}, v{t}")
            a(f"v_exp_f32 v{t+1}, v{t+1}")
        if len(grp) == 1:
            a("s_nop 0")
        for t in T:
            a(f"v_pk_add_f32 {vr(t,2)}, {vr(t,2)}, 1.0 op_sel_hi:[1,0]")
        for t in T:
            a(f"v_rcp_f32 v{t}, v{t}")
            a(f"v_rcp_f32 v{t+1}, v{t+1}")
        if len(grp) == 1:
            a("s_nop 0")
        for r, t in zip(grp, T):
            a(f"v_pk_mul_f32 {vr(r,2)}, {vr(r,2)}, {vr(t,2)}")

def descriptor(name, vgpr, sgpr=102, accum=None):
    if accum is None:
        accum = min(256, (vgpr + 3)//4*4)
    return f""".amdhsa_kernel {name}
  .amdhsa_next_free_vgpr {vgpr}
  .amdhsa_next_free_sgpr {sgpr}
  .amdhsa_accum_offset {accum}
  .amdhsa_group_segment_fixed_size 0
  .amdhsa_kernarg_size 112
  .amdhsa_user_sgpr_count 2
  .amdhsa_user_sgpr_kernarg_segment_ptr 1
  .amdhsa_system_sgpr_workgroup_id_x 1
.end_amdhsa_kernel
"""

import os
STAMPS = int(os.environ.get("STAMPS", "0"))
WS_DBG = 0x1F00000
S_STAMP = 76
def stamp(a, i):
    if not STAMPS: return
    a(f"{'s_memtime' if STAMPS == 1 else 's_memrealtime'} s[{S_STAMP+2*i}:{S_STAMP+2*i+1}]")
    if i == 0:
        a(f"s_memrealtime s[{S_STAMP-2}:{S_STAMP-1}]")
    a("s_waitcnt lgkmcnt(0)")
def stamp_flush(a, n, srd_ws, s_wave, kidx, vt, add=0):
    if not STAMPS: return
    stamp(a, n)
    a(f"s_memrealtime s[{S_STAMP-4}:{S_STAMP-3}]")
    a("s_waitcnt lgkmcnt(0)")
    a("s_mov_b64 exec, 1")
    a(f"s_lshl_b32 s{S_STAMP-1}, s2, 3")
    a(f"s_add_u32 s{S_STAMP-1}, s{S_STAMP-1}, s{s_wave}")
    a(f"s_add_u32 s{S_STAMP-1}, s{S_STAMP-1}, {add}")
    a(f"s_lshl_b32 s{S_STAMP-1}, s{S_STAMP-1}, 6")
    a(f"s_add_u32 s{S_STAMP-1}, s{S_STAMP-1}, {WS_DBG + kidx*0x40000}")
    if os.environ.get("DBGOUT") and add == 0:
        a(f"s_cmp_lg_u32 s2, {os.environ['DBGOUT']}")
        a("s_cbranch_scc1 DBG_skip")
        a(f"s_cmp_lg_u32 s{s_wave}, 0")
        a("s_cbranch_scc1 DBG_skip")
        for i in range(1, n+1):
            a(f"s_sub_u32 s{S_STAMP-3}, s{S_STAMP+2*i}, s{S_STAMP}")
            a(f"v_mov_b32 v{vt}, s{S_STAMP-3}")
            a(f"buffer_store_dword v{vt}, off, s[28:31], 0 offset:{4*i}")
        a("DBG_skip:")
    regs = [S_STAMP-2, S_STAMP-4] + [S_STAMP+2*i for i in range(n+1)]
    for k, r in enumerate(regs):
        a(f"v_mov_b32 v{vt}, s{r}")
        a(f"buffer_store_dword v{vt}, off, {sr(srd_ws,4)}, s{S_STAMP-1} offset:{4*k}")

import subprocess, re, tempfile
def instr_sizes(lines):
    body = [ln for ln in lines if not ln.strip().startswith(".")]
    with tempfile.TemporaryDirectory() as d:
        open(d + "/t.s", "w").write('.amdgcn_target "amdgcn-amd-amdhsa--gfx950"\n.text\n' + "\n".join(body) + "\n")
        subprocess.run(["clang", "-x", "assembler", "-target", "amdgcn-amd-amdhsa", "-mcpu=gfx950", "-c", d + "/t.s", "-o", d + "/t.o"], check=True)
        out = subprocess.run(["llvm-objdump", "-d", "--mcpu=gfx950", d + "/t.o"], capture_output=True, text=True).stdout
    enc = [4*len(m.group(1).split()) for m in re.finditer(r"// [0-9A-F]+: ((?:[0-9A-F]{8} ?)+)", out)]
    sizes, k = [], 0
    for ln in lines:
        t = ln.strip()
        if t.startswith(".") or t.endswith(":"):
            sizes.append(0)
        else:
            sizes.append(enc[k]); k += 1
    assert k == len(enc)
    return sizes

def insert_page_stubs(lines, ret, first_room=3072):
    sizes = instr_sizes(lines)
    out, pages, i, room = [], [], 0, first_room
    while i < len(lines):
        off, j, best = (0 if not pages else 8), i, None
        while j < len(lines):
            t = lines[j].strip()
            noff = off + sizes[j]
            if t.startswith(".p2align"):
                al = 1 << int(t.split()[1]); noff = -(-off // al)*al
            if noff + 4 > room: break
            off = noff; j += 1
            prev = lines[j-1].strip()
            score = 3 if prev.startswith(("s_branch", "s_endpgm", "s_setpc")) else 2 if prev.startswith("v_mfma_f32_32") else 1 if prev.startswith("v_mfma") else 0
            if sizes[j-1] and prev != "s_nop 0" and room - off <= (400 if score == 3 else 128) and (best is None or score >= best[0]): best = (score, j)
        if j >= len(lines):
            out += lines[i:]; break
        score, j = best
        out += lines[i:j]
        n = len(pages)
        if score < 3: out.append(f"    s_branch PG{n}_go")
        out += ["    .p2align 12", f"PG{n}:", f"    s_setpc_b64 s[{ret}:{ret+1}]", "    s_nop 0", f"PG{n}_go:"]
        pages.append(j)
        i, room = j, 4096
    return out, pages

def _regs(tok):
    m = re.fullmatch(r"-?v\[(\d+):(\d+)\]", tok)
    if m: return set(range(int(m.group(1)), int(m.group(2)) + 1))
    m = re.fullmatch(r"-?v(\d+)", tok)
    return {int(m.group(1))} if m else set()

def autowait(gaps, queue, age=7):
    out = []
    for g, gap in enumerate(gaps):
        cur = []
        for ins in gap:
            ops = [t.strip() for t in ins.split(None, 1)[1].split(",")] if " " in ins else []
            m = re.search(r"lgkmcnt\((\d+)\)", ins)
            if m:
                n = int(m.group(1)); del queue[:max(0, len(queue) - n)]
            elif ins.startswith(("v_", "buffer_")):
                used = set().union(*[_regs(t.split()[0]) for t in ops])
                hit = [k for k, (d, _) in enumerate(queue) if d & used]
                if hit:
                    k = max([hit[-1]] + [j for j, (_, t) in enumerate(queue) if g - t >= age])
                    w = f"s_waitcnt lgkmcnt({len(queue) - 1 - k})"
                    (cur if cur or not out else out[-1]).append(w)
                    del queue[:k + 1]
            cur.append(ins)
            if ins.startswith("ds_read"):
                queue.append([_regs(ops[0]), g])
        out.append(cur)
    for q in queue: q[1] -= len(gaps)
    return out
```

```python
import struct

WS_Q  = 0x0000000
WS_KV = 0x0400000
WS_G  = 0x0448000
WS_FL = 0x044C000
WS_ST = 0x0450000
WS_Z2 = 0x0500000
WS_Z1 = 0x0C00000
WS_AH = 0x0C00000
WS_END = 0x2000000

ARG = dict(x=0, wq=8, wk=16, wv=24, wo=32, w_in=48, w_sp=56, b_sp=64, w_out=72, gate=80, out=88, dbg=96, ws=104)
SIZE = dict(x=2048*1024*2, wq=1024*1024*2, wk=1024*32*2, wv=1024*32*2, wo=1024*1024*2, w_in=1024*3584*2,
            w_sp=2048*2048*2, b_sp=2048*2, w_out=1792*1024*2, gate=1024*2, out=2048*1024*2, dbg=256, ws=WS_END)

def f2u(x):
    return struct.unpack("<I", struct.pack("<f", x))[0]

def fhex(x):
    return "0x%08x" % f2u(x)

class Asm:
    def __init__(self):
        self.lines = []
    def __call__(self, s):
        for ln in s.split("\n"):
            ln = ln.strip()
            if ln:
                self.lines.append(ln if ln.endswith(":") else "    " + ln)
    def ext(self, lst):
        for s in lst:
            self(s)
    def text(self):
        return "\n".join(self.lines) + "\n"

def vr(a, n):
    return f"v[{a}:{a+n-1}]" if n > 1 else f"v{a}"
def sr(a, n):
    return f"s[{a}:{a+n-1}]" if n > 1 else f"s{a}"

def load_ptr(a, name, s):
    a(f"s_load_dwordx2 s[{s}:{s+1}], s[0:1], {ARG[name]}")
def finish_srd(a, name, s):
    a(f"s_mov_b32 s{s+2}, {SIZE[name]:#x}")
    a(f"s_mov_b32 s{s+3}, 0x20000")

def interleave(mf, fill):
    out = []
    for i, m in enumerate(mf):
        out.append(m)
        out += fill.get(i, [])
    return out

GELU_C0 = -2.0 * 0.7978845608028654 * 1.4426950408889634
GELU_C1 = GELU_C0 * 0.044715

def gelu_packed(a, regs, tmp, cpair):
    a(".p2align 3")
    for i in range(0, len(regs), 4):
        grp = regs[i:i+4]
        T = [tmp + 2*k for k in range(len(grp))]
        for r, t in zip(grp, T):
            a(f"v_pk_mul_f32 {vr(t,2)}, {vr(r,2)}, {vr(r,2)}")
        for r, t in zip(grp, T):
            a(f"v_pk_fma_f32 {vr(t,2)}, {vr(t,2)}, {vr(cpair,2)}, {vr(cpair,2)} op_sel:[0,1,0] op_sel_hi:[1,1,0]")
        for r, t in zip(grp, T):
            a(f"v_pk_mul_f32 {vr(t,2)}, {vr(t,2)}, {vr(r,2)}")
        for t in T:
            a(f"v_exp_f32 v{t}, v{t}")
            a(f"v_exp_f32 v{t+1}, v{t+1}")
        if len(grp) == 1:
            a("s_nop 0")
        for t in T:
            a(f"v_pk_add_f32 {vr(t,2)}, {vr(t,2)}, 1.0 op_sel_hi:[1,0]")
        for t in T:
            a(f"v_rcp_f32 v{t}, v{t}")
            a(f"v_rcp_f32 v{t+1}, v{t+1}")
        if len(grp) == 1:
            a("s_nop 0")
        for r, t in zip(grp, T):
            a(f"v_pk_mul_f32 {vr(r,2)}, {vr(r,2)}, {vr(t,2)}")

def descriptor(name, vgpr, sgpr=102, accum=None):
    if accum is None:
        accum = min(256, (vgpr + 3)//4*4)
    return f""".amdhsa_kernel {name}
  .amdhsa_next_free_vgpr {vgpr}
  .amdhsa_next_free_sgpr {sgpr}
  .amdhsa_accum_offset {accum}
  .amdhsa_group_segment_fixed_size 0
  .amdhsa_kernarg_size 112
  .amdhsa_user_sgpr_count 2
  .amdhsa_user_sgpr_kernarg_segment_ptr 1
  .amdhsa_system_sgpr_workgroup_id_x 1
.end_amdhsa_kernel
"""

import os
STAMPS = int(os.environ.get("STAMPS", "0"))
WS_DBG = 0x1F00000
S_STAMP = 76
def stamp(a, i):
    if not STAMPS: return
    a(f"{'s_memtime' if STAMPS == 1 else 's_memrealtime'} s[{S_STAMP+2*i}:{S_STAMP+2*i+1}]")
    if i == 0:
        a(f"s_memrealtime s[{S_STAMP-2}:{S_STAMP-1}]")
    a("s_waitcnt lgkmcnt(0)")
def stamp_flush(a, n, srd_ws, s_wave, kidx, vt, add=0):
    if not STAMPS: return
    stamp(a, n)
    a(f"s_memrealtime s[{S_STAMP-4}:{S_STAMP-3}]")
    a("s_waitcnt lgkmcnt(0)")
    a("s_mov_b64 exec, 1")
    a(f"s_lshl_b32 s{S_STAMP-1}, s2, 3")
    a(f"s_add_u32 s{S_STAMP-1}, s{S_STAMP-1}, s{s_wave}")
    a(f"s_add_u32 s{S_STAMP-1}, s{S_STAMP-1}, {add}")
    a(f"s_lshl_b32 s{S_STAMP-1}, s{S_STAMP-1}, 6")
    a(f"s_add_u32 s{S_STAMP-1}, s{S_STAMP-1}, {WS_DBG + kidx*0x40000}")
    if os.environ.get("DBGOUT") and add == 0:
        a(f"s_cmp_lg_u32 s2, {os.environ['DBGOUT']}")
        a("s_cbranch_scc1 DBG_skip")
        a(f"s_cmp_lg_u32 s{s_wave}, 0")
        a("s_cbranch_scc1 DBG_skip")
        for i in range(1, n+1):
            a(f"s_sub_u32 s{S_STAMP-3}, s{S_STAMP+2*i}, s{S_STAMP}")
            a(f"v_mov_b32 v{vt}, s{S_STAMP-3}")
            a(f"buffer_store_dword v{vt}, off, s[28:31], 0 offset:{4*i}")
        a("DBG_skip:")
    regs = [S_STAMP-2, S_STAMP-4] + [S_STAMP+2*i for i in range(n+1)]
    for k, r in enumerate(regs):
        a(f"v_mov_b32 v{vt}, s{r}")
        a(f"buffer_store_dword v{vt}, off, {sr(srd_ws,4)}, s{S_STAMP-1} offset:{4*k}")

import subprocess, re, tempfile
def instr_sizes(lines):
    body = [ln for ln in lines if not ln.strip().startswith(".")]
    with tempfile.TemporaryDirectory() as d:
        open(d + "/t.s", "w").write('.amdgcn_target "amdgcn-amd-amdhsa--gfx950"\n.text\n' + "\n".join(body) + "\n")
        subprocess.run(["clang", "-x", "assembler", "-target", "amdgcn-amd-amdhsa", "-mcpu=gfx950", "-c", d + "/t.s", "-o", d + "/t.o"], check=True)
        out = subprocess.run(["llvm-objdump", "-d", "--mcpu=gfx950", d + "/t.o"], capture_output=True, text=True).stdout
    enc = [4*len(m.group(1).split()) for m in re.finditer(r"// [0-9A-F]+: ((?:[0-9A-F]{8} ?)+)", out)]
    sizes, k = [], 0
    for ln in lines:
        t = ln.strip()
        if t.startswith(".") or t.endswith(":"):
            sizes.append(0)
        else:
            sizes.append(enc[k]); k += 1
    assert k == len(enc)
    return sizes

def insert_page_stubs(lines, ret, first_room=3072, heads={}):
    sizes = instr_sizes(lines)
    out, pages, i, room = [], [], 0, first_room
    while i < len(lines):
        off, j, best = (0 if not pages else 8), i, None
        while j < len(lines):
            t = lines[j].strip()
            noff = off + sizes[j]
            if t.startswith(".p2align"):
                al = 1 << int(t.split()[1]); noff = -(-off // al)*al
            if noff + 4 > room: break
            off = noff; j += 1
            prev = lines[j-1].strip()
            score = 3 if prev.startswith(("s_branch", "s_endpgm", "s_setpc")) else 2 if prev.startswith("v_mfma_f32_32") else 1 if prev.startswith("v_mfma") else 0
            nxt = next((x.strip() for x in lines[j:j+2] if not x.strip().startswith(".")), "")
            if sizes[j-1] and room - off <= heads.get(nxt, -1): best = (4 if score < 3 else 5, j)
            if sizes[j-1] and prev != "s_nop 0" and room - off <= (400 if score == 3 else 128) and (best is None or score >= best[0]): best = (score, j)
        if j >= len(lines):
            out += lines[i:]; break
        score, j = best
        out += lines[i:j]
        n = len(pages)
        if score not in (3, 5): out.append(f"    s_branch PG{n}_go")
        out += ["    .p2align 12", f"PG{n}:", f"    s_setpc_b64 s[{ret}:{ret+1}]", "    s_nop 0", f"PG{n}_go:"]
        pages.append(j)
        i, room = j, 4096
    return out, pages

def _regs(tok):
    m = re.fullmatch(r"-?v\[(\d+):(\d+)\]", tok)
    if m: return set(range(int(m.group(1)), int(m.group(2)) + 1))
    m = re.fullmatch(r"-?v(\d+)", tok)
    return {int(m.group(1))} if m else set()

def autowait(gaps, queue, age=7):
    out = []
    for g, gap in enumerate(gaps):
        cur = []
        for ins in gap:
            ops = [t.strip() for t in ins.split(None, 1)[1].split(",")] if " " in ins else []
            m = re.search(r"lgkmcnt\((\d+)\)", ins)
            if m:
                n = int(m.group(1)); del queue[:max(0, len(queue) - n)]
            elif ins.startswith(("v_", "buffer_")):
                used = set().union(*[_regs(t.split()[0]) for t in ops])
                hit = [k for k, (d, _) in enumerate(queue) if d & used]
                if hit:
                    k = max([hit[-1]] + [j for j, (_, t) in enumerate(queue) if g - t >= age])
                    w = f"s_waitcnt lgkmcnt({len(queue) - 1 - k})"
                    (cur if cur or not out else out[-1]).append(w)
                    del queue[:k + 1]
            cur.append(ins)
            if ins.startswith("ds_read"):
                queue.append([_regs(ops[0]), g])
        out.append(cur)
    for q in queue: q[1] -= len(gaps)
    return out
```

```python
import struct

WS_Q  = 0x0000000
WS_KV = 0x0400000
WS_G  = 0x0448000
WS_FL = 0x044C000
WS_ST = 0x0450000
WS_Z2 = 0x0500000
WS_Z1 = 0x0C00000
WS_AH = 0x0C00000
WS_END = 0x2000000

ARG = dict(x=0, wq=8, wk=16, wv=24, wo=32, w_in=48, w_sp=56, b_sp=64, w_out=72, gate=80, out=88, dbg=96, ws=104)
SIZE = dict(x=2048*1024*2, wq=1024*1024*2, wk=1024*32*2, wv=1024*32*2, wo=1024*1024*2, w_in=1024*3584*2,
            w_sp=2048*2048*2, b_sp=2048*2, w_out=1792*1024*2, gate=1024*2, out=2048*1024*2, dbg=256, ws=WS_END)

def f2u(x):
    return struct.unpack("<I", struct.pack("<f", x))[0]

def fhex(x):
    return "0x%08x" % f2u(x)

class Asm:
    def __init__(self):
        self.lines = []
    def __call__(self, s):
        for ln in s.split("\n"):
            ln = ln.strip()
            if ln:
                self.lines.append(ln if ln.endswith(":") else "    " + ln)
    def ext(self, lst):
        for s in lst:
            self(s)
    def text(self):
        return "\n".join(self.lines) + "\n"

def vr(a, n):
    return f"v[{a}:{a+n-1}]" if n > 1 else f"v{a}"
def sr(a, n):
    return f"s[{a}:{a+n-1}]" if n > 1 else f"s{a}"

def load_ptr(a, name, s):
    a(f"s_load_dwordx2 s[{s}:{s+1}], s[0:1], {ARG[name]}")
def finish_srd(a, name, s):
    a(f"s_mov_b32 s{s+2}, {SIZE[name]:#x}")
    a(f"s_mov_b32 s{s+3}, 0x20000")

def interleave(mf, fill):
    out = []
    for i, m in enumerate(mf):
        out.append(m)
        out += fill.get(i, [])
    return out

GELU_C0 = -2.0 * 0.7978845608028654 * 1.4426950408889634
GELU_C1 = GELU_C0 * 0.044715

def gelu_packed(a, regs, tmp, cpair):
    a(".p2align 3")
    for i in range(0, len(regs), 4):
        grp = regs[i:i+4]
        T = [tmp + 2*k for k in range(len(grp))]
        for r, t in zip(grp, T):
            a(f"v_pk_mul_f32 {vr(t,2)}, {vr(r,2)}, {vr(r,2)}")
        for r, t in zip(grp, T):
            a(f"v_pk_fma_f32 {vr(t,2)}, {vr(t,2)}, {vr(cpair,2)}, {vr(cpair,2)} op_sel:[0,1,0] op_sel_hi:[1,1,0]")
        for r, t in zip(grp, T):
            a(f"v_pk_mul_f32 {vr(t,2)}, {vr(t,2)}, {vr(r,2)}")
        for t in T:
            a(f"v_exp_f32 v{t}, v{t}")
            a(f"v_exp_f32 v{t+1}, v{t+1}")
        if len(grp) == 1:
            a("s_nop 0")
        for t in T:
            a(f"v_pk_add_f32 {vr(t,2)}, {vr(t,2)}, 1.0 op_sel_hi:[1,0]")
        for t in T:
            a(f"v_rcp_f32 v{t}, v{t}")
            a(f"v_rcp_f32 v{t+1}, v{t+1}")
        if len(grp) == 1:
            a("s_nop 0")
        for r, t in zip(grp, T):
            a(f"v_pk_mul_f32 {vr(r,2)}, {vr(r,2)}, {vr(t,2)}")

def descriptor(name, vgpr, sgpr=102, accum=None):
    if accum is None:
        accum = min(256, (vgpr + 3)//4*4)
    return f""".amdhsa_kernel {name}
  .amdhsa_next_free_vgpr {vgpr}
  .amdhsa_next_free_sgpr {sgpr}
  .amdhsa_accum_offset {accum}
  .amdhsa_group_segment_fixed_size 0
  .amdhsa_kernarg_size 112
  .amdhsa_user_sgpr_count 2
  .amdhsa_user_sgpr_kernarg_segment_ptr 1
  .amdhsa_system_sgpr_workgroup_id_x 1
.end_amdhsa_kernel
"""

import os
STAMPS = int(os.environ.get("STAMPS", "0"))
WS_DBG = 0x1F00000
S_STAMP = 76
def stamp(a, i):
    if not STAMPS: return
    a(f"{'s_memtime' if STAMPS == 1 else 's_memrealtime'} s[{S_STAMP+2*i}:{S_STAMP+2*i+1}]")
    if i == 0:
        a(f"s_memrealtime s[{S_STAMP-2}:{S_STAMP-1}]")
    a("s_waitcnt lgkmcnt(0)")
def stamp_flush(a, n, srd_ws, s_wave, kidx, vt, add=0):
    if not STAMPS: return
    stamp(a, n)
    a(f"s_memrealtime s[{S_STAMP-4}:{S_STAMP-3}]")
    a("s_waitcnt lgkmcnt(0)")
    a("s_mov_b64 exec, 1")
    a(f"s_lshl_b32 s{S_STAMP-1}, s2, 3")
    a(f"s_add_u32 s{S_STAMP-1}, s{S_STAMP-1}, s{s_wave}")
    a(f"s_add_u32 s{S_STAMP-1}, s{S_STAMP-1}, {add}")
    a(f"s_lshl_b32 s{S_STAMP-1}, s{S_STAMP-1}, 6")
    a(f"s_add_u32 s{S_STAMP-1}, s{S_STAMP-1}, {WS_DBG + kidx*0x40000}")
    if os.environ.get("SPINDIAG") and add == 0:
        j, k, wg = map(int, os.environ["SPINDIAG"].split(","))
        a(f"s_cmp_lg_u32 s2, {wg}")
        a("s_cbranch_scc1 SD_skip")
        a(f"s_sub_u32 s{S_STAMP-3}, s{S_STAMP+2*k}, s{S_STAMP+2*j}")
        a(f"s_add_u32 s{S_STAMP-3}, s{S_STAMP-3}, 7000")
        a("SD_loop:")
        a("s_memrealtime s[70:71]")
        a("s_waitcnt lgkmcnt(0)")
        a(f"s_sub_u32 s70, s70, s{S_STAMP}")
        a(f"s_cmp_lt_u32 s70, s{S_STAMP-3}")
        a("s_cbranch_scc1 SD_loop")
        a("SD_skip:")
    if os.environ.get("DBGOUT") and add == 0:
        a(f"s_cmp_lg_u32 s2, {os.environ['DBGOUT']}")
        a("s_cbranch_scc1 DBG_skip")
        a(f"s_cmp_lg_u32 s{s_wave}, 0")
        a("s_cbranch_scc1 DBG_skip")
        for i in range(1, n+1):
            a(f"s_sub_u32 s{S_STAMP-3}, s{S_STAMP+2*i}, s{S_STAMP}")
            a(f"v_mov_b32 v{vt}, s{S_STAMP-3}")
            a(f"buffer_store_dword v{vt}, off, s[28:31], 0 offset:{4*i}")
        a("DBG_skip:")
    regs = [S_STAMP-2, S_STAMP-4] + [S_STAMP+2*i for i in range(n+1)]
    for k, r in enumerate(regs):
        a(f"v_mov_b32 v{vt}, s{r}")
        a(f"buffer_store_dword v{vt}, off, {sr(srd_ws,4)}, s{S_STAMP-1} offset:{4*k}")

import subprocess, re, tempfile
def instr_sizes(lines):
    body = [ln for ln in lines if not ln.strip().startswith(".")]
    with tempfile.TemporaryDirectory() as d:
        open(d + "/t.s", "w").write('.amdgcn_target "amdgcn-amd-amdhsa--gfx950"\n.text\n' + "\n".join(body) + "\n")
        subprocess.run(["clang", "-x", "assembler", "-target", "amdgcn-amd-amdhsa", "-mcpu=gfx950", "-c", d + "/t.s", "-o", d + "/t.o"], check=True)
        out = subprocess.run(["llvm-objdump", "-d", "--mcpu=gfx950", d + "/t.o"], capture_output=True, text=True).stdout
    enc = [4*len(m.group(1).split()) for m in re.finditer(r"// [0-9A-F]+: ((?:[0-9A-F]{8} ?)+)", out)]
    sizes, k = [], 0
    for ln in lines:
        t = ln.strip()
        if t.startswith(".") or t.endswith(":"):
            sizes.append(0)
        else:
            sizes.append(enc[k]); k += 1
    assert k == len(enc)
    return sizes

def insert_page_stubs(lines, ret, first_room=3072, heads={}):
    sizes = instr_sizes(lines)
    out, pages, i, room = [], [], 0, first_room
    while i < len(lines):
        off, j, best = (0 if not pages else 8), i, None
        while j < len(lines):
            t = lines[j].strip()
            noff = off + sizes[j]
            if t.startswith(".p2align"):
                al = 1 << int(t.split()[1]); noff = -(-off // al)*al
            if noff + 4 > room: break
            off = noff; j += 1
            prev = lines[j-1].strip()
            score = 3 if prev.startswith(("s_branch", "s_endpgm", "s_setpc")) else 2 if prev.startswith("v_mfma_f32_32") else 1 if prev.startswith("v_mfma") else 0
            nxt = next((x.strip() for x in lines[j:j+2] if not x.strip().startswith(".")), "")
            if sizes[j-1] and room - off <= heads.get(nxt, -1): best = (4 if score < 3 else 5, j)
            if sizes[j-1] and prev != "s_nop 0" and room - off <= (400 if score == 3 else 128) and (best is None or score >= best[0]): best = (score, j)
        if j >= len(lines):
            out += lines[i:]; break
        score, j = best
        out += lines[i:j]
        n = len(pages)
        if score not in (3, 5): out.append(f"    s_branch PG{n}_go")
        out += ["    .p2align 12", f"PG{n}:", f"    s_setpc_b64 s[{ret}:{ret+1}]", "    s_nop 0", f"PG{n}_go:"]
        pages.append(j)
        i, room = j, 4096
    return out, pages

def _regs(tok):
    m = re.fullmatch(r"-?v\[(\d+):(\d+)\]", tok)
    if m: return set(range(int(m.group(1)), int(m.group(2)) + 1))
    m = re.fullmatch(r"-?v(\d+)", tok)
    return {int(m.group(1))} if m else set()

def autowait(gaps, queue, age=7):
    out = []
    for g, gap in enumerate(gaps):
        cur = []
        for ins in gap:
            ops = [t.strip() for t in ins.split(None, 1)[1].split(",")] if " " in ins else []
            m = re.search(r"lgkmcnt\((\d+)\)", ins)
            if m:
                n = int(m.group(1)); del queue[:max(0, len(queue) - n)]
            elif ins.startswith(("v_", "buffer_")):
                used = set().union(*[_regs(t.split()[0]) for t in ops])
                hit = [k for k, (d, _) in enumerate(queue) if d & used]
                if hit:
                    k = max([hit[-1]] + [j for j, (_, t) in enumerate(queue) if g - t >= age])
                    w = f"s_waitcnt lgkmcnt({len(queue) - 1 - k})"
                    (cur if cur or not out else out[-1]).append(w)
                    del queue[:k + 1]
            cur.append(ins)
            if ins.startswith("ds_"):
                queue.append([_regs(ops[0]) if ins.startswith("ds_read") else set(), g])
        out.append(cur)
    for q in queue: q[1] -= len(gaps)
    return out
```
